```python
import torch

def _softmax(x, axis=-1):
    return torch.softmax(x, dim=axis)
def _gelu(x):
    return torch.nn.functional.gelu(x, approximate="tanh")
def _silu(x):
    return torch.nn.functional.silu(x)
def _sigmoid(x):
    return torch.sigmoid(x)
def _layernorm(x, axis=-1, eps=1e-5):
    m = x.mean(dim=axis, keepdim=True)
    v = x.var(dim=axis, keepdim=True, unbiased=False)
    return (x - m) / torch.sqrt(v + eps)
def _scatter_add(tgt, idx, src, axis=0):
    return tgt.clone().index_add_(axis, idx, src)
def _segment_sum(src, seg, n):
    out = torch.zeros((n,) + src.shape[1:], dtype=src.dtype)
    return out.index_add_(0, seg, src)
def _pad(x, pw):
    flat = tuple(v for pair in reversed(pw) for v in pair)
    return torch.nn.functional.pad(x, flat)

kernel_name = 'parallel_sum__ssm_conv_s5__glu_gated_geglu__prompt'

def setup_inputs():

    _w = (lambda a: (lambda t: t.to(torch.bfloat16) if t.is_floating_point() else t)(torch.as_tensor(a)))
    def _A_setup():
        B, S, D = 1, 2048, 1024
        P = D
        Lambda_re = -0.5 * (lambda _x: torch.exp(torch.as_tensor(_x)))((lambda *s: torch.randn(*s, dtype=torch.bfloat16) * 0.2)(P))
        Lambda_im = (lambda *s: torch.randn(*s, dtype=torch.bfloat16) * 0.8)(P) * 1.0
        B_re = (lambda *s: torch.randn(*s, dtype=torch.bfloat16) * 0.2)(P, D) * (D ** -0.5)
        B_im = (lambda *s: torch.randn(*s, dtype=torch.bfloat16) * 0.2)(P, D) * (D ** -0.5)
        C_re = (lambda *s: torch.randn(*s, dtype=torch.bfloat16) * 0.2)(D, P) * (P ** -0.5)
        C_im = (lambda *s: torch.randn(*s, dtype=torch.bfloat16) * 0.2)(D, P) * (P ** -0.5)
        log_dt = (lambda *s: torch.randn(*s, dtype=torch.bfloat16) * 0.2)(P) * 0.3 - 2.0
        Dskip = (lambda *s: torch.randn(*s, dtype=torch.bfloat16) * 0.05)(D)
        return {
            "x": _w((lambda *s: torch.randn(*s, dtype=torch.bfloat16) * 0.05)(B, S, D)),
            "Lambda_re": _w(Lambda_re),
            "Lambda_im": _w(Lambda_im),
            "B_re": _w(B_re),
            "B_im": _w(B_im),
            "C_re": _w(C_re),
            "C_im": _w(C_im),
            "log_dt": _w(log_dt),
            "Dskip": _w(Dskip),
        }
    _A_in = _A_setup()

    def _B_setup():
        B, S, Dm, Df = 1, 2048, 1024, 3584
        return {
            "x": _w((lambda *s: torch.randn(*s, dtype=torch.bfloat16) * 0.05)(B, S, Dm)),
            "w_gate": _w((lambda *s: torch.randn(*s, dtype=torch.bfloat16) * 0.4)(Dm, Df) * (Dm ** -0.5)),
            "w_up": _w((lambda *s: torch.randn(*s, dtype=torch.bfloat16) * 0.4)(Dm, Df) * (Dm ** -0.5)),
            "w_down": _w((lambda *s: torch.randn(*s, dtype=torch.bfloat16) * 0.4)(Df, Dm) * (Df ** -0.5)),
        }
    _B_in = _B_setup()

    return {
        "A_x": _A_in["x"],
        "A_Lambda_re": _A_in["Lambda_re"],
        "A_Lambda_im": _A_in["Lambda_im"],
        "A_B_re": _A_in["B_re"],
        "A_B_im": _A_in["B_im"],
        "A_C_re": _A_in["C_re"],
        "A_C_im": _A_in["C_im"],
        "A_log_dt": _A_in["log_dt"],
        "A_Dskip": _A_in["Dskip"],
        "B_x": _B_in["x"],
        "B_w_gate": _B_in["w_gate"],
        "B_w_up": _B_in["w_up"],
        "B_w_down": _B_in["w_down"],
    }

def reference(A_x, A_Lambda_re, A_Lambda_im, A_B_re, A_B_im, A_C_re, A_C_im, A_log_dt, A_Dskip, B_x, B_w_gate, B_w_up, B_w_down):
    def _A_ref(x, Lambda_re, Lambda_im, B_re, B_im, C_re, C_im, log_dt, Dskip):
        Bsz, L, H = x.shape
        Lam = Lambda_re + 1j * Lambda_im
        Bmat = B_re + 1j * B_im
        Cmat = C_re + 1j * C_im
        dt = torch.exp(log_dt)
        Lam_bar = torch.exp(dt * Lam)
        B_bar = ((Lam_bar - 1.0) / Lam)[:, None] * Bmat
        Bu = torch.einsum("bld,pd->blp", x + 0j, B_bar)
        h = torch.zeros_like(Bu[:, 0, :])
        hs = []
        for t in range(L):
            h = Lam_bar[None, :] * h + Bu[:, t, :]
            hs.append(h)
        hseq = torch.stack(hs, 1)
        y = 2.0 * torch.einsum("blp,dp->bld", hseq, Cmat).real + x * Dskip[None, None, :]
        return y

    def _B_ref(x, w_gate, w_up, w_down):
        g = torch.einsum("bsd,df->bsf", x, w_gate)
        u = torch.einsum("bsd,df->bsf", x, w_up)
        h = _gelu(g) * u
        return torch.einsum("bsf,fd->bsd", h, w_down)

    x = A_x
    xn = _layernorm(x, axis=-1)
    return x + _A_ref(xn, A_Lambda_re, A_Lambda_im, A_B_re, A_B_im, A_C_re, A_C_im, A_log_dt, A_Dskip) + _B_ref(xn, B_w_gate, B_w_up, B_w_down)
```

```python
class Asm:
    def __init__(self):
        self.lines = []
    def __call__(self, s=""):
        for l in s.split("\n"):
            self.lines.append(l)
    def label(self, name):
        self.lines.append(name + ":")
    def text(self):
        return "\n".join(self.lines) + "\n"

def vr(base, n=1):
    return f"v{base}" if n == 1 else f"v[{base}:{base+n-1}]"
def ar(base, n=1):
    return f"a{base}" if n == 1 else f"a[{base}:{base+n-1}]"
def sr(base, n=1):
    return f"s{base}" if n == 1 else f"s[{base}:{base+n-1}]"

def kernel_header(name):
    return f""".globl {name}
.p2align 8
.type {name},@function
{name}:"""

def kernel_desc(name, nvgpr, accum_offset, nsgpr=102, kernarg=128):
    return f""".amdhsa_kernel {name}
  .amdhsa_next_free_vgpr {nvgpr}
  .amdhsa_next_free_sgpr {nsgpr}
  .amdhsa_accum_offset {accum_offset}
  .amdhsa_group_segment_fixed_size 0
  .amdhsa_kernarg_size {kernarg}
  .amdhsa_user_sgpr_count 2
  .amdhsa_user_sgpr_kernarg_segment_ptr 1
  .amdhsa_system_sgpr_workgroup_id_x 1
.end_amdhsa_kernel"""
```

```python
import sys
from asmlib import *
PRE = """
    s_load_dwordx2 s[4:5], s[0:1], 0
    s_load_dwordx2 s[6:7], s[0:1], 8
    s_waitcnt lgkmcnt(0)
    s_mov_b32 s8, s4
    s_mov_b32 s9, s5
    s_mov_b32 s10, 0x4000000
    s_mov_b32 s11, 0x00020000
    s_mov_b32 s12, s6
    s_mov_b32 s13, s7
    s_mov_b32 s14, 0x1000000
    s_mov_b32 s15, 0x00020000
"""
def post(nseg):
    s = """    s_waitcnt lgkmcnt(0)
    v_cmp_eq_u32 vcc, 0, v0
    s_and_saveexec_b64 s[30:31], vcc
    s_cbranch_execz L_end
    s_lshl_b32 s3, s2, 8
    v_mov_b32 v1, s3
"""
    for seg in range(nseg + 1):
        for w in range(4):
            s += f"    v_mov_b32 v{2+w}, s{32+4*seg+w}\n"
        s += f"    buffer_store_dwordx4 v[2:5], v1, s[12:15], 0 offen offset:{16*seg}\n    s_nop 1\n"
    s += "    s_waitcnt vmcnt(0)\nL_end:\n    s_endpgm\n"
    return s

def gen(pattern, dma, wsbytes, nseg=6, iters=16, waves=4, depth=16, perxcd=True):
    A = Asm()
    A(f"; @launch grid=(256,1,1) block=({waves*64},1,1) lds=131072")
    A('.amdgcn_target "amdgcn-amd-amdhsa--gfx950"\n.text')
    A(kernel_header("mb_kernel"))
    A(PRE)
    A("    v_and_b32 v2, 63, v0\n    v_lshrrev_b32 v3, 6, v0\n    s_nop 0\n    v_readfirstlane_b32 s18, v3")
    if pattern == "lin":
        A("    v_lshlrev_b32 v1, 4, v2"); step = 1024
    elif pattern == "r128":
        A("    v_lshrrev_b32 v4, 3, v2\n    v_lshlrev_b32 v4, 11, v4\n    v_and_b32 v5, 7, v2\n    v_lshl_add_u32 v1, v5, 4, v4"); step = 128
    elif pattern == "r64":
        A("    v_lshrrev_b32 v4, 2, v2\n    v_lshlrev_b32 v4, 11, v4\n    v_and_b32 v5, 3, v2\n    v_lshl_add_u32 v1, v5, 4, v4"); step = 64
    elif pattern == "frag":
        A("    v_and_b32 v4, 15, v2\n    v_lshlrev_b32 v4, 11, v4\n    v_lshrrev_b32 v5, 4, v2\n    v_lshl_add_u32 v1, v5, 4, v4"); step = 64
    elif pattern == "r128x":
        A("    v_lshrrev_b32 v4, 3, v2\n    v_and_b32 v5, 7, v2\n    v_xor_b32 v5, v5, v4\n    v_lshlrev_b32 v4, 11, v4\n    v_lshl_add_u32 v1, v5, 4, v4"); step = 128
    if perxcd:
        A(f"    s_and_b32 s19, s2, 7\n    s_mul_i32 s19, s19, {wsbytes}")
    else:
        A("    s_mov_b32 s19, 0")
    A(f"    s_lshr_b32 s20, s2, 3\n    s_lshl_b32 s20, s20, 2\n    s_add_u32 s20, s20, s18\n    s_mul_i32 s20, s20, {16384*3}\n    s_and_b32 s20, s20, {wsbytes-1}")
    A("    s_lshl_b32 s21, s18, 15")
    A("    s_barrier")
    for seg in range(nseg + 1):
        A(f"    s_memtime s[{32+4*seg}:{33+4*seg}]\n    s_memrealtime s[{34+4*seg}:{35+4*seg}]")
        if seg == nseg: break
        A(f"    s_mov_b32 s17, {iters}")
        A.label(f"L_loop{seg}")
        A("    s_add_u32 s22, s19, s20")
        for d in range(depth):
            if pattern == "lin": off = d * 1024
            elif pattern.startswith("r128"): off = (d % 16) * 128
            else: off = d * 64
            A(f"    s_add_u32 s23, s22, {off}")
            if dma:
                A(f"    s_add_u32 m0, s21, {d*1024}")
                A(f"    s_waitcnt vmcnt({depth-1})")
                A(f"    buffer_load_dwordx4 v1, s[8:11], s23 offen lds")
            else:
                A(f"    s_waitcnt vmcnt({depth-1})")
                A(f"    buffer_load_dwordx4 {vr(8+4*d,4)}, v1, s[8:11], s23 offen")
        if pattern in ("lin",) or pattern.startswith("r128"):
            A(f"    s_add_u32 s20, s20, 16384\n    s_and_b32 s20, s20, {wsbytes-1}")
        else:
            A(f"    s_xor_b32 s20, s20, 1024\n    s_and_b32 s24, s20, 1024\n    s_cmp_eq_u32 s24, 0\n    s_cselect_b32 s24, 32768, 0\n    s_add_u32 s20, s20, s24\n    s_and_b32 s20, s20, {wsbytes-1}")
        A(f"    s_sub_u32 s17, s17, 1\n    s_cmp_lg_u32 s17, 0\n    s_cbranch_scc1 L_loop{seg}")
    A("    s_waitcnt vmcnt(0)")
    A(post(nseg))
    A('.section .rodata,"a"\n.p2align 6')
    A(kernel_desc("mb_kernel", 128, 128))
    return A.text()
if __name__ == "__main__":
    names = []
    for pat in ("lin", "r128", "r128x", "r64", "frag"):
        for dma in (0, 1):
            n = f"mb2_{pat}_{'dma' if dma else 'reg'}_2M.s"
            open(n, "w").write(gen(pat, dma, 2 << 20)); names.append(n)
    for dma in (0, 1):
        n = f"mb2_lin_{'dma' if dma else 'reg'}_8M.s"
        open(n, "w").write(gen("lin", dma, 8 << 20)); names.append(n)
    print(" ".join(names))
```

```python
from asmlib import *
from mb2 import PRE, post
def gen(waves):
    A = Asm()
    A(f"; @launch grid=(256,1,1) block=({waves*64},1,1) lds=0")
    A('.amdgcn_target "amdgcn-amd-amdhsa--gfx950"\n.text')
    A(kernel_header("mb_kernel"))
    A(PRE)
    for i in range(8, 100): A(f"    v_mov_b32 v{i}, 1.0")
    cfg = [(64, 16, "fma"), (64, 32, "fma"), (64, 1, "fma"), (1024, 1, "fma"), (1024, 2, "fma"), (1024, 1, "mul"), (1024, 2, "mul"),
           (16, 64, "fma"), (256, 4, "fma"), (2048, 1, "pk"), (0, 1, "fma"), (64, 16, "mul")]
    nseg = len(cfg)
    for seg in range(nseg + 1):
        A(f"    s_memtime s[{32+4*seg}:{33+4*seg}]\n    s_memrealtime s[{34+4*seg}:{35+4*seg}]")
        if seg == nseg: break
        n, it, kind = cfg[seg]
        A(f"    s_mov_b32 s17, {it}")
        A.label(f"L_loop{seg}")
        for i in range(n):
            d = 8 + 2 * (i % 32)
            if kind == "fma": A(f"    v_fma_f32 v{d}, v{d}, v80, v81")
            elif kind == "mul": A(f"    v_mul_f32 v{d}, v{d}, v80")
            else: A(f"    v_pk_fma_f32 v[{d}:{d+1}], v[{d}:{d+1}], v[80:81], v[82:83]")
        A(f"    s_sub_u32 s17, s17, 1\n    s_cmp_lg_u32 s17, 0\n    s_cbranch_scc1 L_loop{seg}")
    A(post(nseg))
    A('.section .rodata,"a"\n.p2align 6')
    A(kernel_desc("mb_kernel", 192, 128))
    return A.text()
if __name__ == "__main__":
    for w in (4, 8):
        open(f"mb4_w{w}.s", "w").write(gen(w))
```

```python
from asmlib import *
from mb2 import PRE, post
def gen(pf):
    A = Asm()
    A(f"; @launch grid=(256,1,1) block=(256,1,1) lds=0")
    A('.amdgcn_target "amdgcn-amd-amdhsa--gfx950"\n.text')
    A(kernel_header("mb_kernel"))
    A(PRE)
    for i in range(8, 100): A(f"    v_mov_b32 v{i}, 1.0")
    if pf:
        A("""    s_getpc_b64 s[20:21]
    s_and_b32 s20, s20, 0xffffff00
    s_mov_b32 s22, 0x10000
    s_mov_b32 s23, 0x00020000
    v_lshlrev_b32 v1, 7, v0
    buffer_load_dword v2, v1, s[20:23], 0 offen
    s_mov_b32 s24, 0x8000
    buffer_load_dword v2, v1, s[20:23], s24 offen
    s_waitcnt vmcnt(0)""")
    A("    s_mov_b32 s17, 300\nL_w:\n    s_sub_u32 s17, s17, 1\n    s_cmp_lg_u32 s17, 0\n    s_cbranch_scc1 L_w\n    s_barrier")
    cfg = [(512, "mfma2"), (512, "mfma2"), (1024, "pk"), (1024, "pk"), (1024, "mul"), (1024,"mul"), (512, "mfma1"), (512, "mfma1")]
    nseg = len(cfg)
    for seg in range(nseg + 1):
        A(f"    s_memtime s[{32+4*seg}:{33+4*seg}]\n    s_memrealtime s[{34+4*seg}:{35+4*seg}]")
        if seg == nseg: break
        n, kind = cfg[seg]
        for i in range(n):
            d = 8 + 2 * (i % 32)
            if kind == "mul": A(f"    v_mul_f32 v{d}, v{d}, v80")
            elif kind == "pk": A(f"    v_pk_fma_f32 v[{d}:{d+1}], v[{d}:{d+1}], v[80:81], v[82:83]")
            else:
                t = 4 * (i % 32)
                A(f"    v_mfma_f32_16x16x32_bf16 a[{t}:{t+3}], v[8:11], v[12:15], a[{t}:{t+3}]")
                if kind == "mfma2": A(f"    s_add_u32 s25, s25, 0x12345")
    A(post(nseg))
    A("    .fill 8192, 4, 0xbf800000")
    A('.section .rodata,"a"\n.p2align 6')
    A(kernel_desc("mb_kernel", 256, 128))
    return A.text()
if __name__ == "__main__":
    open("mb9_pf0.s", "w").write(gen(0)); open("mb9_pf1.s", "w").write(gen(1))
```

```python
from asmlib import *
from mb2 import PRE, post
def gen(kinds, accv=False):
    A = Asm()
    A(f"; @launch grid=(256,1,1) block=(256,1,1) lds=65536")
    A('.amdgcn_target "amdgcn-amd-amdhsa--gfx950"\n.text')
    A(kernel_header("mb_kernel"))
    A(PRE)
    for i in range(8, 128): A(f"    v_mov_b32 v{i}, 1.0")
    A("    v_lshlrev_b32 v1, 3, v0\n    v_lshlrev_b32 v2, 4, v0")
    for i in range(128, 256): A(f"    v_mov_b32 v{i}, 0")
    for i in range(128): A(f"    v_accvgpr_write_b32 a{i}, 0")
    A("    s_mov_b32 m0, 0x8000")
    nseg = len(kinds)
    def filler(k, i):
        d = 32 + 2 * (i % 24)
        return {"f": f"v_fma_f32 v{d}, v{d}, v20, v21", "m": f"v_mul_f32 v{d}, v{d}, v20",
                "p": f"v_pk_fma_f32 v[{d}:{d+1}], v[{d}:{d+1}], v[20:21], v[22:23]", "q": f"v_pk_mul_f32 v[{d}:{d+1}], v[{d}:{d+1}], v[20:21]",
                "e": f"v_exp_f32 v{d}, v{d}", "c": f"v_cvt_pk_bf16_f32 v{d}, v{d}, v{d+1}", "d": f"ds_read_b64_tr_b16 v[{96+2*(i%8)}:{97+2*(i%8)}], v1",
                "s": "s_add_u32 s25, s25, 1", "a": f"v_accvgpr_read_b32 v{d}, a127", "w": "s_waitcnt lgkmcnt(6)",
                "x": f"v_permlane16_swap_b32 v{d}, v{d+1}",
                "D": f"ds_read_b64_tr_b16 a[{96+2*(i%8)}:{97+2*(i%8)}], v1", "g": f"v_fmac_f32 v{d}, v{d+1}, v{20+(i&3)}", "h": f"v_fmac_f32 v32, v33, v20", "S": "s_add_u32 s25, s25, 0x1000", "j": f"v_fmac_f32 v{32+(i&1)}, v{34+(i&1)}, v20",
                "L": "buffer_load_dwordx4 v2, s[8:11], 0 offen lds",
                "b": f"buffer_load_dwordx4 a[{64+4*(i%4)}:{67+4*(i%4)}], v2, s[8:11], 0 offen"}[k]
    for seg in range(nseg + 1):
        A("    s_waitcnt lgkmcnt(0)")
        A(f"    s_memtime s[{32+4*seg}:{33+4*seg}]\n    s_memrealtime s[{34+4*seg}:{35+4*seg}]")
        if seg == nseg: break
        pat = kinds[seg].split("|")
        A(f"    s_mov_b32 s17, 8\n    .p2align 3")
        A.label(f"L_loop{seg}")
        n = 0
        for i in range(64):
            t = 4 * (i % 28)
            if accv: A(f"    v_mfma_f32_16x16x32_bf16 v[{128+t}:{128+t+3}], a[8:11], a[12:15], v[{128+t}:{128+t+3}]")
            else: A(f"    v_mfma_f32_16x16x32_bf16 a[{t}:{t+3}], v[8:11], v[12:15], a[{t}:{t+3}]")
            for k in pat[i % len(pat)]:
                A("    " + filler(k, n)); n += 1
        A(f"    s_sub_u32 s17, s17, 1\n    s_cmp_lg_u32 s17, 0\n    s_cbranch_scc1 L_loop{seg}")
    A(post(nseg))
    A('.section .rodata,"a"\n.p2align 6')
    A(kernel_desc("mb_kernel", 384, 256))
    return A.text()
if __name__ == "__main__":
    k = ["", "Dg|Dg|bg|gw", "Df|Df|bf|fw", "Df|Df|bf|gw", "Dg|Dg|bg|Sgw", "Dg|DSS|bg|gw", "Dj|Dj|bj|jw", "Dg|Dg|Lg|gw", "D|D|L|w", "Dg|Dg|gg|gw", "Df|Df|ff|fw", "Dc|Dc|bc|cw", "Da|Da|ba|aw", "gD|gD|gb|gw", "Dg|Dg|bg|wg"]
    open("mb10_e.s", "w").write(gen(k, True))
    print(k)
```

```python
from asmlib import *
from mb2 import PRE, post
def gen(kinds, accv=False):
    A = Asm()
    A(f"; @launch grid=(256,1,1) block=(256,1,1) lds=65536")
    A('.amdgcn_target "amdgcn-amd-amdhsa--gfx950"\n.text')
    A(kernel_header("mb_kernel"))
    A(PRE)
    for i in range(8, 128): A(f"    v_mov_b32 v{i}, 1.0")
    A("    v_lshlrev_b32 v1, 3, v0\n    v_lshlrev_b32 v2, 4, v0")
    for i in range(128, 256): A(f"    v_mov_b32 v{i}, 0")
    for i in range(128): A(f"    v_accvgpr_write_b32 a{i}, 0")
    A("    s_mov_b32 m0, 0x8000\n    s_lshl_b32 s26, s2, 12\n    s_add_u32 s26, s26, 0x100000\n    s_mov_b64 vcc, 0")
    nseg = len(kinds)
    def filler(k, i):
        d = 32 + 2 * (i % 24)
        return {"f": f"v_fma_f32 v{d}, v{d}, v20, v21", "m": f"v_mul_f32 v{d}, v{d}, v20",
                "p": f"v_pk_fma_f32 v[{d}:{d+1}], v[{d}:{d+1}], v[20:21], v[22:23]", "q": f"v_pk_mul_f32 v[{d}:{d+1}], v[{d}:{d+1}], v[20:21]",
                "e": f"v_exp_f32 v{d}, v{d}", "c": f"v_cvt_pk_bf16_f32 v{d}, v{d}, v{d+1}", "d": f"ds_read_b64_tr_b16 v[{96+2*(i%8)}:{97+2*(i%8)}], v1",
                "s": "s_add_u32 s25, s25, 1", "a": f"v_accvgpr_read_b32 v{d}, a127", "w": "s_waitcnt lgkmcnt(6)",
                "x": f"v_permlane16_swap_b32 v{d}, v{d+1}",
                "D": f"ds_read_b64_tr_b16 a[{96+2*(i%8)}:{97+2*(i%8)}], v1", "g": f"v_fmac_f32 v{d}, v{d+1}, v{20+(i&3)}", "h": f"v_fmac_f32 v32, v33, v20", "S": "s_add_u32 s25, s25, 0x1000", "j": f"v_fmac_f32 v{32+(i&1)}, v{34+(i&1)}, v20",
                "L": "buffer_load_dwordx4 v2, s[8:11], 0 offen lds",
                "B": f"ds_read_b128 a[{96+4*(i%4)}:{99+4*(i%4)}], v2", "W": f"ds_write_b64 v1, v[20:21] offset:32768", "E": "s_mov_b64 exec, -1",
                "T": "buffer_store_dwordx4 v[20:23], v2, s[12:15], s26 offen", "R": "s_barrier", "n": "s_cbranch_vccnz L_end",
                "b": f"buffer_load_dwordx4 a[{64+4*(i%4)}:{67+4*(i%4)}], v2, s[8:11], 0 offen"}[k]
    for seg in range(nseg + 1):
        A("    s_waitcnt lgkmcnt(0)")
        A(f"    s_memtime s[{32+4*seg}:{33+4*seg}]\n    s_memrealtime s[{34+4*seg}:{35+4*seg}]")
        if seg == nseg: break
        pat = kinds[seg].split("|")
        A(f"    s_mov_b32 s17, 8\n    .p2align 3")
        A.label(f"L_loop{seg}")
        n = 0
        for i in range(64):
            t = 4 * ((i // 2) % 28)
            if accv: A(f"    v_mfma_f32_16x16x32_bf16 v[{128+t}:{128+t+3}], a[8:11], a[12:15], v[{128+t}:{128+t+3}]")
            else: A(f"    v_mfma_f32_16x16x32_bf16 a[{t}:{t+3}], v[8:11], v[12:15], a[{t}:{t+3}]")
            for k in pat[i % len(pat)]:
                A("    " + filler(k, n)); n += 1
        A(f"    s_sub_u32 s17, s17, 1\n    s_cmp_lg_u32 s17, 0\n    s_cbranch_scc1 L_loop{seg}")
    A(post(nseg))
    A('.section .rodata,"a"\n.p2align 6')
    A(kernel_desc("mb_kernel", 384, 256))
    return A.text()
if __name__ == "__main__":
    k1 = ["", "Dg|Dg|bg|gg|Dg|Dg|bg|gw", "DD|gg|bg|gg|DD|gg|bg|gw", "DS|DS|bg|gg|Dg|Dg|gg|gw", "DSg|DSg|bg|Sgg|Dg|Dg|gg|gw", "DW|Dg|gg|gg|Dg|Dg|gg|gw", "Db|Dg|gg|gg|Dg|Dg|gg|gw",
          "Bg|gg|Bg|gw", "BSb|gg|Bg|gw", "BSS|bg|Bg|gw", "Bg|Sb|Bg|gw", "B|ST|B|w||||||||||||", "Dg|Dg|wb|gg|Dg|Dg|gg|gw", "Dg|Dg|Swggn|gg|Dg|Dg|gg|gw", "wRD|D||||||w||||||||"]
    open("mb10_f.s", "w").write(gen(k1, True))
    print(k1)
```

```python
from asmlib import *
from mb2 import PRE
A = Asm()
A("; @launch grid=(16,1,1) block=(64,1,1) lds=0")
A('.amdgcn_target "amdgcn-amd-amdhsa--gfx950"\n.text')
A(kernel_header("mb_kernel"))
A(PRE)
A("""    s_getreg_b32 s16, hwreg(HW_REG_XCC_ID)
    v_mov_b32 v2, s16
    s_lshl_b32 s3, s2, 2
    v_mov_b32 v1, s3
    buffer_store_dword v2, v1, s[12:15], 0 offen
    s_waitcnt vmcnt(0)
    s_endpgm""")
A('.section .rodata,"a"\n.p2align 6')
A(kernel_desc("mb_kernel", 8, 8))
open("mb13.s", "w").write(A.text())
```
